```python
import torch

def _softmax(x, axis=-1):
    return torch.softmax(x, dim=axis)
def _gelu(x):
    return torch.nn.functional.gelu(x, approximate="tanh")
def _silu(x):
    return torch.nn.functional.silu(x)
def _sigmoid(x):
    return torch.sigmoid(x)
def _layernorm(x, axis=-1, eps=1e-5):
    m = x.mean(dim=axis, keepdim=True)
    v = x.var(dim=axis, keepdim=True, unbiased=False)
    return (x - m) / torch.sqrt(v + eps)
def _scatter_add(tgt, idx, src, axis=0):
    return tgt.clone().index_add_(axis, idx, src)
def _segment_sum(src, seg, n):
    out = torch.zeros((n,) + src.shape[1:], dtype=src.dtype)
    return out.index_add_(0, seg, src)
def _pad(x, pw):
    flat = tuple(v for pair in reversed(pw) for v in pair)
    return torch.nn.functional.pad(x, flat)

kernel_name = 'sequential_preLN__mha_block_cached__dense_activation_silu__decode'

def setup_inputs():

    _w = (lambda a: (lambda t: t.to(torch.bfloat16) if t.is_floating_point() else t)(torch.as_tensor(a)))
    def _A_setup():
        B, Sq, D = 1, 1, 512
        H, Sk, Dh = 32, 65536, 128
        return {
            "x": _w((lambda *s: torch.randn(*s, dtype=torch.bfloat16) * 0.1)(B, Sq, D)),
            "k_cache": _w((lambda *s: torch.randn(*s, dtype=torch.bfloat16) * 1.6)(B, H, Sk, Dh)),
            "v_cache": _w((lambda *s: torch.randn(*s, dtype=torch.bfloat16) * 1.6)(B, H, Sk, Dh)),
            "wq": _w((lambda *s: torch.randn(*s, dtype=torch.bfloat16) * 1.6)(D, H * Dh) * (D ** -0.5)),
            "wo": _w((lambda *s: torch.randn(*s, dtype=torch.bfloat16) * 1.6)(H * Dh, D) * ((H * Dh) ** -0.5)),
        }
    _A_in = _A_setup()

    def _B_setup():
        B, S, D, F = 1, 1, 512, 1792
        return {
            "x": _w((lambda *s: torch.randn(*s, dtype=torch.bfloat16) * 0.1)(B, S, D)),
            "w1": _w((lambda *s: torch.randn(*s, dtype=torch.bfloat16) * 3.2)(D, F) * (D ** -0.5)),
            "w2": _w((lambda *s: torch.randn(*s, dtype=torch.bfloat16) * 3.2)(F, D) * (F ** -0.5)),
        }
    _B_in = _B_setup()

    return {
        "A_x": _A_in["x"],
        "A_k_cache": _A_in["k_cache"],
        "A_v_cache": _A_in["v_cache"],
        "A_wq": _A_in["wq"],
        "A_wo": _A_in["wo"],
        "B_x": _B_in["x"],
        "B_w1": _B_in["w1"],
        "B_w2": _B_in["w2"],
    }

def reference(A_x, A_k_cache, A_v_cache, A_wq, A_wo, B_x, B_w1, B_w2):
    def _A_ref(x, k_cache, v_cache, wq, wo):
        B, Sq, D = x.shape
        H, Dh = 32, 128
        q = (lambda x, *d: x.permute(*d))((x @ wq).reshape(B, Sq, H, Dh), 0, 2, 1, 3)
        scores = torch.einsum("bhqd,bhkd->bhqk", q, k_cache) * (Dh ** -0.5)
        p = _softmax(scores, axis=-1)
        o = torch.einsum("bhqk,bhkd->bhqd", p, v_cache)
        return (lambda x, *d: x.permute(*d))(o, 0, 2, 1, 3).reshape(B, Sq, H * Dh) @ wo

    def _B_ref(x, w1, w2):
        h = torch.einsum("bsd,df->bsf", x, w1)
        h = _silu(h)
        out = torch.einsum("bsf,fd->bsd", h, w2)
        return out

    x = A_x
    h = x + _A_ref(_layernorm(x, axis=-1), A_k_cache, A_v_cache, A_wq, A_wo)
    h2 = h + _B_ref(_layernorm(h, axis=-1), B_w1, B_w2)
    return h2
```

```python
import re, bisect

def regs_of(tok):
    tok = tok.strip()
    neg = tok.startswith('-')
    t = tok.lstrip('-')
    m = re.fullmatch(r'abs\((.*)\)', t) or re.fullmatch(r'\|(.*)\|', t)
    if m: t = m.group(1)
    m = re.fullmatch(r'([vsa])(\d+)', t)
    if m: return [(m.group(1), int(m.group(2)))]
    m = re.fullmatch(r'([vsa])\[(\d+):(\d+)\]', t)
    if m: return [(m.group(1), i) for i in range(int(m.group(2)), int(m.group(3))+1)]
    if t == 'vcc': return [('s', 'vcc_lo'), ('s', 'vcc_hi')]
    if t in ('vcc_lo', 'vcc_hi'): return [('s', t)]
    if t == 'exec': return [('s', 'exec_lo'), ('s', 'exec_hi')]
    if t in ('exec_lo', 'exec_hi', 'm0'): return [('s', t)]
    return []

TRANS = ('v_exp_f32', 'v_log_f32', 'v_rcp_f32', 'v_rsq_f32', 'v_sqrt_f32', 'v_sin_f32', 'v_cos_f32', 'v_rcp_iflag_f32')

class Ins:
    def __init__(self, text):
        self.text = text
        t = text.split(';')[0].strip()
        parts = t.split(None, 1)
        self.op = parts[0]
        rest = parts[1] if len(parts) > 1 else ''
        ops = []; cur = ''; d = 0
        for ch in rest:
            if ch in '[(': d += 1
            if ch in '])': d -= 1
            if ch == ',' and d == 0:
                ops.append(cur.strip()); cur = ''
            else: cur += ch
        if cur.strip(): ops.append(cur.strip())
        self.mods = ''
        if ops:
            sp = ops[-1].split(None, 1)
            ops[-1] = sp[0]
            if len(sp) > 1: self.mods = sp[1]
        self.ops = ops
        op = self.op
        self.base = re.sub(r'_(e32|e64|dpp|sdwa)$', '', op)
        self.is_mfma = op.startswith('v_mfma')
        self.is_valu = op.startswith('v_') and not self.is_mfma
        self.is_dpp = self.is_valu and ('row_' in self.mods or 'quad_perm' in self.mods or op.endswith('_dpp'))
        self.is_trans = self.base in TRANS
        self.is_dot = op.startswith('v_dot')
        self.is_ds = op.startswith('ds_')
        self.is_vmem = op.startswith(('buffer_', 'global_', 'flat_'))
        self.is_perml = op.startswith('v_permlane')
        self.is_rl = self.base in ('v_readlane_b32', 'v_readfirstlane_b32')
        self.w = []; self.r = []; self.dppr = []; self.mA = []; self.mC = []; self.stdata = []
        R = lambda i: regs_of(ops[i]) if i < len(ops) else []
        if self.is_mfma:
            self.w = R(0); self.mA = R(1) + R(2); self.mC = R(3); self.r = self.mA + self.mC
        elif self.is_valu:
            if self.base == 'v_nop': pass
            elif self.is_perml:
                self.w = R(0) + R(1); self.r = R(0) + R(1)
            elif re.match(r'v_(add|sub|subrev)_co_u32', self.base):
                self.w = R(0) + R(1); self.r = R(2) + R(3)
            elif re.match(r'v_(addc|subb|subbrev)_co_u32', self.base):
                self.w = R(0) + R(1); self.r = R(2) + R(3) + R(4)
            else:
                self.w = R(0)
                self.r = [x for i in range(1, len(ops)) for x in R(i)]
                if self.base in ('v_fmac_f32', 'v_dot2c_f32_bf16', 'v_writelane_b32'): self.r += R(0)
                if self.is_dpp: self.dppr = R(1)
        elif self.is_ds:
            if op.startswith('ds_read') or op.startswith('ds_bpermute') or op.startswith('ds_swizzle') or '_rtn' in op:
                self.w = R(0); self.r = [x for i in range(1, len(ops)) for x in R(i)]
            else:
                self.r = [x for i in range(len(ops)) for x in R(i)]
        elif self.is_vmem:
            if '_load' in op:
                if ' lds' in ' ' + self.mods or self.mods.endswith('lds'):
                    self.r = [x for i in range(len(ops)) for x in R(i)]
                else:
                    self.w = R(0); self.r = [x for i in range(1, len(ops)) for x in R(i)]
            elif '_store' in op:
                self.r = [x for i in range(len(ops)) for x in R(i)]
                if 'x4' in op or 'x3' in op:
                    self.stdata = R(0) if op.startswith('buffer') else R(1)
            elif 'atomic' in op:
                self.r = [x for i in range(len(ops)) for x in R(i)]
                if 'sc0' in self.mods: self.w = R(0)
        self.states = 1
        if op == 's_nop': self.states = int(ops[0], 0) + 1
        self.passes = 0
        if self.is_mfma:
            self.passes = {'v_mfma_f32_16x16x32_bf16': 4, 'v_mfma_f32_32x32x16_bf16': 8, 'v_mfma_f32_16x16x4_f32': 8}[op]
        self.sgemm = op.endswith('_f32') and self.is_mfma

def need(p, c):
    n = 0
    pw = set(p.w);
    cr = set(c.r); cw = set(c.w)
    vw = {x for x in pw if x[0] in 'va'}; sw = {x for x in pw if x[0] == 's'}
    if p.is_valu:
        if vw & set(c.dppr): n = max(n, 2)
        if c.is_mfma and vw & cr: n = max(n, 2)
        if c.is_perml and vw & cr: n = max(n, 2)
        if c.is_rl and vw & cr: n = max(n, 1)
        if p.is_trans and c.is_valu and not c.is_trans and vw & cr: n = max(n, 1)
        if p.is_trans and (c.is_mfma) and vw & cr: n = max(n, 2)
        if sw:
            if c.is_valu and sw & cr: n = max(n, 4 if c.is_rl or c.base == 'v_writelane_b32' else 2)
            if c.is_vmem and sw & cr: n = max(n, 5)
        if p.is_dot:
            hit = vw & (cr | cw)
            if hit:
                if c.is_dot and c.op == p.op:
                    ab = set(regs_of(c.ops[1]) + regs_of(c.ops[2]))
                    if vw & ab: n = max(n, 3)
                else: n = max(n, 3)
    if p.is_mfma:
        P = p.passes
        tab_other = ({2: 4, 4: 6, 8: 10, 16: 18} if p.sgemm else {2: 5, 4: 8, 8: 12, 16: 20})[P]
        if c.is_mfma:
            if vw & set(c.mA): n = max(n, tab_other)
            if vw & set(c.mC):
                if set(c.mC) == vw and c.op == p.op: n = max(n, 2 if P == 2 else 0)
                else: n = max(n, {2: 4, 4: 6, 8: 10, 16: 18}[P])
            elif vw & cw and c.op != p.op: n = max(n, tab_other)
        elif (c.is_valu or c.is_vmem or c.is_ds) and vw & (cr | cw): n = max(n, tab_other)
        if c.is_valu and set(p.mC) & cw and not p.sgemm: n = max(n, {2: 1, 4: 3, 8: 7, 16: 15}[P])
    if p.stdata and set(p.stdata) & cw: n = max(n, 2 if c.is_valu else 1)
    if p.op.startswith('s_') and p.ops and p.ops[0] == 'm0' and (c.is_vmem and 'lds' in c.mods): n = max(n, 1)
    return n

_cache = {}
def parse(t):
    if t not in _cache: _cache[t] = Ins(t)
    return _cache[t]

class Asm:
    def __init__(self): self.L = []
    def __call__(self, text):
        for ln in text.split('\n'):
            ln = ln.strip()
            if not ln: continue
            if ln.startswith(';') or ln.startswith('.'): self.L.append(('c', ln))
            elif ln.endswith(':'): self.L.append(('l', ln[:-1]))
            else: self.L.append(('i', ln))
    def label(self, n): self.L.append(('l', n))
    def finish(self, verbose=False):
        L = self.L
        nins = 0
        while True:
            idx = [k for k, e in enumerate(L) if e[0] == 'i']
            I = {k: parse(L[k][1]) for k in idx}
            lab = {}
            for k, e in enumerate(L):
                if e[0] == 'l':
                    j = bisect.bisect_right(idx, k)
                    lab[e[1]] = idx[j] if j < len(idx) else None
            pred = {k: [] for k in idx}
            for a_, k in enumerate(idx):
                ins = I[k]
                nx = idx[a_+1] if a_+1 < len(idx) else None
                if ins.op == 's_endpgm': continue
                if ins.op == 's_branch':
                    pred[lab[ins.ops[0]]].append(k); continue
                if ins.op.startswith('s_cbranch'):
                    pred[lab[ins.ops[0]]].append(k)
                if nx is not None: pred[nx].append(k)
            fixes = []
            for k in idx:
                if fixes and k - fixes[-1][0] < 48: continue
                c = I[k]
                if not (c.is_valu or c.is_mfma or c.is_vmem or c.is_ds): continue
                worst = 0
                stack = [(p, 0) for p in pred[k]]
                seen = {}
                while stack:
                    p, d = stack.pop()
                    if p in seen and seen[p] <= d: continue
                    seen[p] = d
                    n = need(I[p], c)
                    if n > d: worst = max(worst, n - d)
                    d2 = d + I[p].states
                    if d2 < 20:
                        for q in pred[p]: stack.append((q, d2))
                if worst: fixes.append((k, worst))
            if not fixes: break
            for k, worst in reversed(fixes):
                L.insert(k, ('i', f's_nop {worst-1}'))
                nins += 1
        if verbose: print(f'; inserted {nins} s_nop', flush=True)
        out = []
        for t, x in L:
            if t == 'l': out.append(x + ':')
            elif t == 'i': out.append('    ' + x)
            else: out.append(x)
        return '\n'.join(out) + '\n'
```

```python
import sys, json, struct
sys.path.insert(0, 'work')
from asmlib import Asm

KNAME = 'sequential_preLN__mha_block_cached__dense_activation_silu__decode_kernel'
HEADER = open('sequential_preLN__mha_block_cached__dense_activation_silu__decode.s.ref').read().split('; Override launch')[0]

def f2u(x): return struct.unpack('<I', struct.pack('<f', x))[0]

P0 = 0x0
P1 = 0x2000
P2 = 0x22000
P3 = 0x26000
WS_SIZE = 0x34000
STAMP = 0x100000
L_SC = 0
L_QP = 32768
L_OP = L_QP + 2048
L_FL = L_OP + 2048
L_RD = L_FL + 256
L_H  = L_RD + 2048
LDS_SIZE = L_H + 2048

NMID = 64
NFFN = 28

def gen(D=5, T=1, NB=32, RHO=4, DH=8, rmap=5, stamps=False, sig=500, codepf=True, kvflags='nt', wqflags='',
        wflags='nt', pst='sc1', pld='sc1', pollsleep=0, name=KNAME):
    a = Asm()
    a('.amdgcn_target "amdgcn-amd-amdhsa--gfx950"')
    a('.text'); a(f'.globl {name}'); a('.p2align 8'); a(f'.type {name},@function')
    a.label(name)
    uid = [0]
    def L(p):
        uid[0] += 1
        return f'L_{p}{uid[0]}'
    def stamp(k):
        if stamps:
            a('s_memrealtime s[96:97]'); a('s_waitcnt lgkmcnt(0)'); a(f's_mov_b32 s{76+k}, s96')
    def stamp_store():
        if not stamps: return
        a('s_mov_b64 exec, -1')
        a('s_getreg_b32 s91, hwreg(HW_REG_XCC_ID)')
        a('s_lshl_b32 s92, s2, 3'); a('s_add_u32 s92, s92, s3'); a('s_lshl_b32 s92, s92, 6'); a(f's_add_u32 s92, s92, {STAMP}')
        a('v_mov_b32 v3, 0')
        for k in range(16): a(f'v_writelane_b32 v3, s{76+k}, {k}')
        a('v_lshlrev_b32 v1, 2, v0'); a('v_add_u32 v1, s92, v1')
        a('s_mov_b32 exec_lo, 0xffff'); a('s_mov_b32 exec_hi, 0')
        a('global_store_dword v1, v3, s[36:37]')
        a('s_waitcnt vmcnt(0)')
    def exec_lo(n):
        a(f's_mov_b32 exec_lo, {hex((1 << n) - 1)}'); a('s_mov_b32 exec_hi, 0')
    def srd(d, lo, size):
        a(f's_mov_b32 s{d}, s{lo}'); a(f's_mov_b32 s{d+1}, s{lo+1}'); a(f's_mov_b32 s{d+2}, {size}'); a(f's_mov_b32 s{d+3}, 0x20000')
    def allreduce(op, v, t, rows=4):
        for m in ('quad_perm:[1,0,3,2]', 'quad_perm:[2,3,0,1]', 'row_half_mirror', 'row_mirror'):
            a(f'{op}_dpp v{v}, v{v}, v{v} {m} row_mask:0xf bank_mask:0xf')
        a(f'v_mov_b32 v{t}, v{v}'); a(f'v_permlane16_swap_b32 v{v}, v{t}'); a(f'{op} v{v}, v{v}, v{t}')
        if rows == 4:
            a(f'v_mov_b32 v{t}, v{v}'); a(f'v_permlane32_swap_b32 v{v}, v{t}'); a(f'{op} v{v}, v{v}, v{t}')
    def rnd(d, s):
        a(f'v_cvt_pk_bf16_f32 v{d}, v{s}, v{s}'); a(f'v_and_b32 v{d}, 0xffff0000, v{d}')
    def masks(M, t0, t1):
        a(f'v_and_b32 v{t0}, 1, v0'); a(f'v_lshlrev_b32 v{t0}, 4, v{t0}')
        a(f'v_mov_b32 v{t1}, 0xffff'); a(f'v_lshlrev_b32 v{t0}, v{t0}, v{t1}')
        a(f'v_bfe_u32 v{t1}, v0, 1, 3')
        for w in range(4):
            a(f'v_cmp_eq_u32 vcc, {w}, v{t1}'); a(f'v_cndmask_b32 v{M+w}, 0, v{t0}, vcc')
    def lds_spin(addr, dst, sreg, sleep):
        lp = L('sp'); dn = L('spd')
        a(f's_mov_b32 s75, 0x200000')
        a.label(lp)
        a(f'ds_read_b32 v{dst}, v{addr}'); a('s_waitcnt lgkmcnt(0)')
        a(f'v_readfirstlane_b32 s{sreg}, v{dst}')
        a(f's_cmp_lg_u32 s{sreg}, -1'); a(f's_cbranch_scc1 {dn}')
        a('s_sub_u32 s75, s75, 1'); a(f's_cbranch_scc1 {dn}')
        a(f's_sleep {sleep}'); a(f's_branch {lp}')
        a.label(dn)

    a('s_cmp_ge_u32 s2, 256'); a('s_cbranch_scc1 L_end')
    a('s_load_dwordx16 s[16:31], s[0:1], 0')
    a('s_load_dwordx4 s[32:35], s[0:1], 64')
    a('s_load_dwordx2 s[36:37], s[0:1], 80')
    a('v_lshrrev_b32 v1, 6, v0')
    a('v_and_b32 v0, 63, v0')
    a('v_readfirstlane_b32 s3, v1')
    if rmap == 5:
        a('s_and_b32 s4, s2, 7'); a('s_lshl_b32 s4, s4, 5'); a('s_lshr_b32 s5, s2, 3'); a('s_add_u32 s4, s4, s5')
    elif rmap == 3:
        a('s_and_b32 s4, s2, 31'); a('s_lshl_b32 s4, s4, 3'); a('s_lshr_b32 s5, s2, 5'); a('s_add_u32 s4, s4, s5')
    else:
        a('s_mov_b32 s4, s2')
    a('s_cmp_ge_u32 s3, 4'); a('s_cbranch_scc1 L_H')

    VOFF, VSC, Q, M, A, DD, PT = 1, 2, 4, 8, 12, 16, 20
    R1, R2, TT, SS, MX, P2R, SCN = 28, 29, 30, 34, 35, 36, 37
    RING, K0 = 40, 104
    a(f's_lshl_b32 s5, s3, {10 + (T.bit_length() - 1)}')
    a('v_lshlrev_b32 v1, 4, v0'); a('v_add_u32 v1, s5, v1')
    a('s_lshl_b32 s6, s4, 21')
    a('s_mov_b32 s48, 0')
    a('s_waitcnt lgkmcnt(0)')
    if stamps:
        for k in range(16): a(f's_mov_b32 s{76+k}, 0')
    a('s_add_u32 s40, s18, s6'); a('s_addc_u32 s41, s19, 0'); a('s_mov_b32 s42, 0x200000'); a('s_mov_b32 s43, 0x20000')
    def slot(i, first):
        if first and i < NB: return K0 + 4*i
        return RING + 4*(i % 16)
    out = []
    def issue(i, first=False):
        j = i % 512
        r = slot(i, first)
        if i == 512: a('s_mov_b32 s48, 0')
        srdn = 's[40:43]' if i < 512 else 's[44:47]'
        a(f'buffer_load_dwordx4 v[{r}:{r+3}], v1, {srdn}, s48 offen offset:{(j % T)*1024} {kvflags}')
        if j % T == T - 1: a(f's_add_u32 s48, s48, {4*T*1024}')
        out.append(i)
    def wait(i):
        if i in out:
            n = len(out) - 1 - out.index(i)
            a(f's_waitcnt vmcnt({n})')
            del out[:out.index(i)+1]
    def group_reduce(G, b):
        p = [PT + (4*G + x) % 8 for x in range(4)]
        a(f'v_add_f32_dpp v{R1}, v{p[0]}, v{p[0]} row_ror:8 row_mask:0xf bank_mask:0x3')
        a(f'v_add_f32_dpp v{R2}, v{p[1]}, v{p[1]} row_ror:8 row_mask:0xf bank_mask:0x3')
        a(f'v_add_f32_dpp v{R1}, v{p[2]}, v{p[2]} row_ror:8 row_mask:0xf bank_mask:0xc')
        a(f'v_add_f32_dpp v{R2}, v{p[3]}, v{p[3]} row_ror:8 row_mask:0xf bank_mask:0xc')
        t = TT + G
        a(f'v_add_f32_dpp v{t}, v{R1}, v{R1} row_half_mirror row_mask:0xf bank_mask:0x5')
        a(f'v_add_f32_dpp v{t}, v{R2}, v{R2} row_half_mirror row_mask:0xf bank_mask:0xa')
        a(f'v_add_f32_dpp v{t}, v{t}, v{t} quad_perm:[1,0,3,2] row_mask:0xf bank_mask:0xf')
        a(f'v_add_f32_dpp v{t}, v{t}, v{t} quad_perm:[2,3,0,1] row_mask:0xf bank_mask:0xf')
    def kproc(i, first=False):
        t = i % 16
        r = slot(i, first)
        p = PT + t % 8
        a(f'v_dot2_f32_bf16 v{p}, v{r}, v{Q}, 0')
        for x in range(1, 4): a(f'v_dot2_f32_bf16 v{p}, v{r+x}, v{Q+x}, v{p}')
        if t % 4 == 0 and t > 0: group_reduce(t//4 - 1, i//16)
        if t == 15:
            group_reduce(3, i//16)
            a(f'v_cndmask_b32 v{SS}, v{TT}, v{TT+1}, s[50:51]')
            a(f'v_cndmask_b32 v{SS}, v{SS}, v{TT+2}, s[52:53]')
            a(f'v_cndmask_b32 v{SS}, v{SS}, v{TT+3}, s[54:55]')
            rnd(SS, SS)
            a(f'v_mul_f32 v{SS}, s56, v{SS}')
            rnd(SS, SS)
            a(f'v_max_f32 v{MX}, v{MX}, v{SS}')
            a(f'ds_write_b32 v{VSC}, v{SS}')
            a(f'v_add_u32 v{VSC}, 256, v{VSC}')
    stamp(0)
    n_iss = 0
    for n in range(min(D, NB)):
        issue(n, True); n_iss += 1
    a('s_add_u32 s44, s20, s6'); a('s_addc_u32 s45, s21, 0'); a('s_mov_b32 s46, 0x200000'); a('s_mov_b32 s47, 0x20000')
    srd(60, 36, WS_SIZE)
    a('s_mov_b32 s50, 0x22222222'); a('s_mov_b32 s51, s50')
    a('s_mov_b32 s52, 0x44444444'); a('s_mov_b32 s53, s52')
    a('s_mov_b32 s54, 0x88888888'); a('s_mov_b32 s55, s54')
    a(f's_mov_b32 s56, {hex(f2u(128 ** -0.5))}'); a(f's_mov_b32 s57, {hex(f2u(1.4426950408889634))}')
    masks(M, 20, 21)
    a('s_lshl_b32 s5, s3, 13')
    a(f'v_lshlrev_b32 v{VSC}, 2, v0'); a(f'v_add_u32 v{VSC}, s5, v{VSC}')
    a(f'v_and_b32 v3, 15, v0'); a('v_lshlrev_b32 v3, 5, v3')
    while n_iss < NB:
        wait(n_iss - D); issue(n_iss, True); n_iss += 1
    a('s_barrier')
    stamp(1)
    QA, QB = 232, 20
    for w in range(4):
        a(f'ds_read_b128 v[{QA+4*w}:{QA+4*w+3}], v3 offset:{L_QP + 512*w}')
        a(f'ds_read_b128 v[{QB+4*w}:{QB+4*w+3}], v3 offset:{L_QP + 512*w + 16}')
    def step():
        nonlocal n_iss
        wait(n_iss - D); issue(n_iss, True); n_iss += 1
    if NB > D: step()
    a('s_waitcnt lgkmcnt(0)')
    for base, qd in ((QA, Q), (QB, Q+2)):
        for h in (0, 2):
            a(f'v_pk_add_f32 v[{base+h}:{base+h+1}], v[{base+h}:{base+h+1}], v[{base+4+h}:{base+5+h}]')
            a(f'v_pk_add_f32 v[{base+8+h}:{base+9+h}], v[{base+8+h}:{base+9+h}], v[{base+12+h}:{base+13+h}]')
        for h in (0, 2):
            a(f'v_pk_add_f32 v[{base+h}:{base+h+1}], v[{base+h}:{base+h+1}], v[{base+8+h}:{base+9+h}]')
        a(f'v_cvt_pk_bf16_f32 v{qd}, v{base}, v{base+1}')
        a(f'v_cvt_pk_bf16_f32 v{qd+1}, v{base+2}, v{base+3}')
    a(f'v_mov_b32 v{MX}, 0xff800000')
    n_pr = 0
    while True:
        if n_pr == n_iss - D and n_pr % 16 == 0 and n_pr >= NB: break
        if n_iss >= NB + 16: assert n_pr > n_iss - 16, 'ring overrun'
        wait(n_iss - D); issue(n_iss, True); n_iss += 1
        k = 0
        while k < RHO and n_pr <= n_iss - 1 - D:
            kproc(n_pr, True); n_pr += 1; k += 1
    b0 = n_pr // 16
    assert b0 <= 30
    a(f's_mov_b32 s49, {31 - b0}')
    a('.p2align 3')
    a.label('L_kloop')
    for t in range(16):
        i = 16*b0 + t
        wait(i); issue(i + D); kproc(i)
    a('s_sub_u32 s49, s49, 1'); a('s_cmp_lg_u32 s49, 0'); a('s_cbranch_scc1 L_kloop')
    sh = 16*(31 - b0 - 1)
    out[:] = [x + sh for x in out]
    for t in range(16):
        i = 16*31 + t
        wait(i); issue(i + D); kproc(i)
    a('s_lshl_b32 s5, s3, 13')
    a(f'v_lshlrev_b32 v{VSC}, 2, v0'); a(f'v_add_u32 v{VSC}, s5, v{VSC}')
    a(f'ds_read_b32 v{SCN}, v{VSC}')
    allreduce('v_max_f32', MX, 3)
    a(f'v_mul_f32 v{MX}, s57, v{MX}')
    a('s_lshl_b32 s5, s3, 2'); a(f's_add_u32 s5, s5, {L_FL}')
    a('v_mov_b32 v38, s5')
    a(f'ds_write_b32 v38, v{MX}')
    for x in range(4): a(f'v_mov_b32 v{DD+x}, 0')
    stamp(2)
    def vtop(last):
        a('s_waitcnt lgkmcnt(0)')
        a(f'v_fma_f32 v{P2R}, v{SCN}, s57, -v{MX}')
        if not last:
            a(f'ds_read_b32 v{SCN}, v{VSC} offset:256')
            a(f'v_add_u32 v{VSC}, 256, v{VSC}')
        a(f'v_exp_f32 v{P2R}, v{P2R}')
        a(f'v_cvt_pk_bf16_f32 v{P2R}, v{P2R}, v{P2R}')
    def vproc(i, doissue):
        t = i % 16
        n = 4*(t & 3) + (t >> 2)
        for w in range(4):
            a(f'v_and_b32_dpp v{A+w}, v{P2R}, v{M+w} row_newbcast:{n} row_mask:0xf bank_mask:0xf')
        wait(i)
        if doissue: issue(i + D)
        r = slot(i, False)
        a(f'v_mfma_f32_16x16x32_bf16 v[{DD}:{DD+3}], v[{A}:{A+3}], v[{r}:{r+3}], v[{DD}:{DD+3}]')
    NPEEL = 32 - (sig // 16)
    assert 1 <= NPEEL <= 4
    a(f's_mov_b32 s49, {32 - NPEEL}')
    a('.p2align 3')
    a.label('L_vloop')
    vtop(False)
    for t in range(16): vproc(512 + t, True)
    a('s_sub_u32 s49, s49, 1'); a('s_cmp_lg_u32 s49, 0'); a('s_cbranch_scc1 L_vloop')
    sh = 16*(32 - NPEEL - 1)
    out[:] = [x + sh for x in out]
    for b in range(32 - NPEEL, 32):
        vtop(b == 31)
        if b == 31:
            a('v_add_u32 v39, 16, v38')
            lds_spin(39, 3, 59, 1)
        for t in range(16):
            j = 16*b + t
            if j == sig: a('ds_write_b32 v38, v38 offset:32')
            vproc(512 + j, j + D < 512)
    stamp(3)
    a('v_lshrrev_b32 v39, 4, v0'); a('v_lshlrev_b32 v39, 4, v39')
    a('v_and_b32 v38, 15, v0'); a('v_lshl_add_u32 v38, v38, 5, v39')
    a('s_lshl_b32 s5, s3, 9'); a('v_add_u32 v39, s5, v38')
    for x in range(4): a(f'v_mul_f32 v{DD+x}, v3, v{DD+x}')
    exec_lo(32)
    a(f'ds_write_b128 v39, v[{DD}:{DD+3}] offset:{L_OP}')
    a('v_lshlrev_b32 v38, 4, v0')
    a('s_lshl_b32 s5, s4, 9'); a(f's_add_u32 s5, s5, {P1}')
    a('s_waitcnt lgkmcnt(0)')
    a('s_barrier')
    a('s_cmp_lg_u32 s3, 0'); a('s_cbranch_scc1 L_S_done')
    for w in range(4): a(f'ds_read_b128 v[{40+4*w}:{43+4*w}], v38 offset:{L_OP + 512*w}')
    a('s_waitcnt lgkmcnt(2)')
    for h in (0, 2): a(f'v_pk_add_f32 v[{40+h}:{41+h}], v[{40+h}:{41+h}], v[{44+h}:{45+h}]')
    a('s_waitcnt lgkmcnt(0)')
    for h in (0, 2): a(f'v_pk_add_f32 v[{48+h}:{49+h}], v[{48+h}:{49+h}], v[{52+h}:{53+h}]')
    for h in (0, 2): a(f'v_pk_add_f32 v[{40+h}:{41+h}], v[{40+h}:{41+h}], v[{48+h}:{49+h}]')
    a(f'buffer_store_dwordx4 v[40:43], v38, s[60:63], s5 offen {pst}')
    a.label('L_S_done')
    stamp(4)
    stamp_store()
    a('s_endpgm')

    a.label('L_H')
    HM, HS, HA, HD = 4, 8, 12, 16
    W = 64
    PR = 192
    a('s_sub_u32 s7, s3, 4')
    a('s_lshr_b32 s8, s4, 3')
    a('v_lshlrev_b32 v1, 4, v0')
    a('v_lshrrev_b32 v2, 4, v0')
    a('v_and_b32 v3, 15, v0')
    a('v_lshlrev_b32 v20, 13, v2'); a('v_lshl_add_u32 v20, v3, 4, v20')
    a('v_lshl_add_u32 v21, v3, 2, v2'); a('s_lshl_b32 s5, s7, 7'); a('v_add_lshl_u32 v21, v21, s5, 1')
    a('s_lshl_b32 s48, s7, 20'); a('s_lshl_b32 s5, s8, 8'); a('s_add_u32 s48, s48, s5')
    a('s_waitcnt lgkmcnt(0)')
    if stamps:
        for k in range(16): a(f's_mov_b32 s{76+k}, 0')
    stamp(0)
    srd(40, 16, 1024)
    srd(44, 22, 4 << 20)
    a('buffer_load_dwordx4 v[24:27], v1, s[40:43], 0 offen')
    a('buffer_load_ushort v22, v21, s[40:43], 0 offen')
    a('buffer_load_ushort v23, v21, s[40:43], 0 offen offset:128')
    hout = ['x0', 'x1', 'x2']
    def hwait(tag):
        if tag in hout:
            n = len(hout) - 1 - hout.index(tag)
            a(f's_waitcnt vmcnt({n})')
            del hout[:hout.index(tag)+1]
    def wq_issue(t):
        a(f'buffer_load_dwordx4 v[{W+4*t}:{W+4*t+3}], v20, s[44:47], s48 offen {wqflags}')
        a('s_add_u32 s48, s48, 32768')
        hout.append(t)
    for t in range(min(DH, 32)): wq_issue(t)
    if codepf:
        a('s_getpc_b64 s[64:65]')
        a.label('L_pc')
        a(f's_sub_u32 s64, s64, L_pc-{name}'); a('s_subb_u32 s65, s65, 0')
        a(f's_mov_b32 s66, L_codeend-{name}'); a('s_mov_b32 s67, 0x20000')
        a('v_lshlrev_b32 v60, 7, v0'); a('s_lshl_b32 s5, s7, 13')
        a('buffer_load_dword v61, v60, s[64:67], s5 offen')
        hout.append('pf')
    srd(60, 36, WS_SIZE)
    masks(HM, 28, 29)
    a('v_mov_b32 v28, -1'); a('v_lshlrev_b32 v29, 2, v0')
    a(f'ds_write_b32 v29, v28 offset:{L_FL}')
    a(f's_mov_b32 s57, {hex(f2u(1.4426950408889634))}')
    a(f's_mov_b32 s73, {hex(f2u(1e-5))}')
    a(f's_mov_b32 s72, {hex(f2u(1.0/512))}')
    for x in range(4): a(f'v_mov_b32 v{HD+x}, 0')
    def ln_stats(X, t0, t1):
        a(f'v_pk_add_f32 v[{t1}:{t1+1}], v[{X}:{X+1}], v[{X+2}:{X+3}]')
        a(f'v_pk_add_f32 v[{t1+2}:{t1+3}], v[{X+4}:{X+5}], v[{X+6}:{X+7}]')
        a(f'v_pk_add_f32 v[{t1}:{t1+1}], v[{t1}:{t1+1}], v[{t1+2}:{t1+3}]')
        a(f'v_add_f32 v{t0}, v{t1}, v{t1+1}')
        allreduce('v_add_f32', t0, t1)
        a(f'v_mul_f32 v{t0}, s72, v{t0}')
        for x in range(8): a(f'v_sub_f32 v{X+x}, v{X+x}, v{t0}')
        a(f'v_mul_f32 v{t1}, v{X}, v{X}'); a(f'v_mul_f32 v{t1+1}, v{X+1}, v{X+1}')
        for x in range(2, 8): a(f'v_fmac_f32 v{t1 + x % 2}, v{X+x}, v{X+x}')
        a(f'v_add_f32 v{t1}, v{t1}, v{t1+1}')
        rnd(t0, t0)
        allreduce('v_add_f32', t1, t1+1)
        a(f'v_mul_f32 v{t1}, s72, v{t1}')
        rnd(t1, t1)
        a(f'v_add_f32 v{t1}, s73, v{t1}')
        rnd(t1, t1)
        a(f'v_sqrt_f32 v{t1}, v{t1}')
        rnd(t1, t1)
        a(f'v_rcp_f32 v{t1+1}, v{t1}')
    def ln_apply(x, t0, t1, tmp):
        a(f'v_sub_f32 v{x}, v{x}, v{t0}')
        rnd(x, x)
        a(f'v_mul_f32 v{tmp}, v{x}, v{t1+1}')
        a(f'v_fma_f32 v{x}, -v{tmp}, v{t1}, v{x}')
        a(f'v_fma_f32 v{x}, v{x}, v{t1+1}, v{tmp}')
    hwait('x2')
    stamp(1)
    for x in range(4):
        a(f'v_lshlrev_b32 v{32+2*x}, 16, v{24+x}'); a(f'v_and_b32 v{33+2*x}, 0xffff0000, v{24+x}')
    a('v_lshlrev_b32 v22, 16, v22'); a('v_lshlrev_b32 v23, 16, v23')
    ln_stats(32, 28, 40)
    ln_apply(22, 28, 40, 30); ln_apply(23, 28, 40, 31)
    a('v_cvt_pk_bf16_f32 v22, v22, v22'); a('v_cvt_pk_bf16_f32 v23, v23, v23')
    for t in range(32):
        for w in range(4):
            a(f'v_and_b32_dpp v{HA+w}, v{22 + t//16}, v{HM+w} row_newbcast:{t % 16} row_mask:0xf bank_mask:0xf')
        hwait(t)
        if t + DH < 32: wq_issue(t + DH)
        a(f'v_mfma_f32_16x16x32_bf16 v[{HD}:{HD+3}], v[{HA}:{HA+3}], v[{W+4*t}:{W+4*t+3}], v[{HD}:{HD+3}]')
    a('v_lshlrev_b32 v28, 4, v2'); a('v_lshl_add_u32 v28, v3, 5, v28')
    a('s_lshl_b32 s5, s7, 9'); a('v_add_u32 v29, s5, v28')
    exec_lo(32)
    a(f'ds_write_b128 v29, v[{HD}:{HD+3}] offset:{L_QP}')
    a('s_mov_b64 exec, -1')
    a('s_waitcnt lgkmcnt(0)')
    stamp(2)
    a('s_barrier')
    srd(40, 34, 256)
    a('s_cmp_lg_u32 s7, 0'); a('s_cbranch_scc1 L_noinit')
    for x in range(4): a(f'v_mov_b32 v{32+x}, -1')
    exec_lo(32)
    a('s_lshl_b32 s5, s4, 9'); a(f's_add_u32 s5, s5, {P1}')
    a(f'buffer_store_dwordx4 v[32:35], v1, s[60:63], s5 offen {pst}')
    exec_lo(2)
    a('s_lshl_b32 s5, s4, 5')
    a(f'buffer_store_dwordx4 v[32:35], v1, s[60:63], s5 offen {pst}')
    a(f's_cmp_ge_u32 s2, {NMID}'); a('s_cbranch_scc1 L_init2')
    exec_lo(16)
    a('s_lshl_b32 s5, s2, 8'); a(f's_add_u32 s5, s5, {P2}')
    a(f'buffer_store_dwordx4 v[32:35], v1, s[60:63], s5 offen {pst}')
    a('s_branch L_init3')
    a.label('L_init2')
    a(f's_cmp_ge_u32 s2, {NMID + NFFN}'); a('s_cbranch_scc1 L_init3')
    a('s_mov_b64 exec, -1')
    a(f's_sub_u32 s5, s2, {NMID}'); a('s_lshl_b32 s5, s5, 11'); a(f's_add_u32 s5, s5, {P3}')
    a(f'buffer_store_dwordx4 v[32:35], v1, s[60:63], s5 offen {pst}')
    a(f'buffer_store_dwordx4 v[32:35], v1, s[60:63], s5 offen offset:1024 {pst}')
    a.label('L_init3')
    exec_lo(1)
    a('v_mov_b32 v36, 1'); a('v_mov_b32 v37, s2')
    a('s_waitcnt vmcnt(0)')
    a(f'buffer_store_byte v36, v37, s[40:43], 0 offen {pst}')
    a('s_mov_b64 exec, -1')
    a.label('L_noinit')
    a('s_lshl_b32 s5, s7, 2'); a(f's_add_u32 s5, s5, {L_FL}'); a('v_mov_b32 v30, s5')
    lds_spin(30, 31, 58, 8)
    stamp(3)
    a('s_lshl_b32 s5, s7, 13'); a('v_add_u32 v29, s5, v1')
    for k in range(8): a(f'ds_read_b128 v[{W+4*k}:{W+4*k+3}], v29 offset:{1024*k}')
    a('v_mov_b32 v32, 0'); a('v_mov_b32 v33, 0')
    for k in range(8):
        a(f's_waitcnt lgkmcnt({7-k})')
        for x in range(4): a(f'v_fma_f32 v{W+4*k+x}, v{W+4*k+x}, s57, -v31')
        for x in range(4): a(f'v_exp_f32 v{W+4*k+x}, v{W+4*k+x}')
        for x in range(4): a(f'v_add_f32 v{32 + x % 2}, v{32 + x % 2}, v{W+4*k+x}')
    a('v_add_f32 v33, v32, v33')
    allreduce('v_add_f32', 33, 34)
    a('v_mov_b32 v32, v31')
    exec_lo(1)
    a('s_lshl_b32 s5, s4, 2'); a('s_add_u32 s5, s5, s7'); a('s_lshl_b32 s5, s5, 3')
    a('v_mov_b32 v34, 0')
    a('s_mov_b64 exec, -1')
    a('v_lshlrev_b32 v35, 2, v0')
    a('s_mov_b32 s75, 0x40000'); a('s_mov_b32 s59, 0x01010101')
    a.label('L_fl')
    a(f'buffer_load_dword v36, v35, s[40:43], 0 offen {pld}')
    a('s_waitcnt vmcnt(0)')
    a('v_cmp_ne_u32 vcc, s59, v36')
    a('s_cbranch_vccz L_fl_done')
    a('s_sub_u32 s75, s75, 1'); a('s_cbranch_scc1 L_fl_done')
    a('s_sleep 16'); a('s_branch L_fl')
    a.label('L_fl_done')
    exec_lo(1)
    a(f'buffer_store_dwordx2 v[32:33], v34, s[60:63], s5 offen {pst}')
    a('s_mov_b64 exec, -1')
    a('v_and_b32 v35, 31, v0'); a('v_lshlrev_b32 v35, 3, v35')
    a('s_lshl_b32 s5, s8, 8')
    a('s_mov_b32 s75, 0x40000')
    a.label('L_p0')
    a(f'buffer_load_dwordx2 v[36:37], v35, s[60:63], s5 offen {pld}')
    a('s_waitcnt vmcnt(0)')
    a('v_max_u32 v38, v36, v37')
    a('v_cmp_eq_u32 vcc, -1, v38')
    a('s_cbranch_vccz L_p0_done')
    a('s_sub_u32 s75, s75, 1'); a('s_cbranch_scc1 L_p0_done')
    a('s_sleep 32'); a('s_branch L_p0')
    a.label('L_p0_done')
    a('v_mov_b32 v38, v36')
    allreduce('v_max_f32', 38, 39, rows=2)
    a('v_sub_f32 v36, v36, v38'); a('v_sub_f32 v31, v31, v38')
    a('v_exp_f32 v36, v36'); a('v_exp_f32 v31, v31')
    a('v_mul_f32 v37, v37, v36')
    allreduce('v_add_f32', 37, 39, rows=2)
    a('v_rcp_f32 v37, v37')
    a('v_mul_f32 v31, v31, v37')
    a('ds_write_b32 v30, v31 offset:16')
    stamp(4)
    a(f's_cmp_ge_u32 s2, {NMID + NFFN}'); a('s_cbranch_scc1 L_H_done')
    a('v_bfe_u32 v32, v0, 3, 1'); a('v_mul_u32_u24 v32, 0x202, v32'); a('v_add_u32 v32, 0x100, v32')
    a('v_or_b32 v33, 0x0c0c0000, v32'); a('v_lshlrev_b32 v32, 16, v32'); a('v_or_b32 v32, 0x0c0c, v32')
    a('v_and_b32 v34, 1, v0'); a('v_cmp_eq_u32 vcc, 1, v34'); a('v_cndmask_b32 v32, v33, v32, vcc')
    a('v_bfe_u32 v33, v0, 1, 2'); a('v_mov_b32 v34, 0x0c0c0c0c')
    for w in range(4):
        a(f'v_cmp_eq_u32 vcc, {w}, v33'); a(f'v_cndmask_b32 v{HS+w}, v34, v32, vcc')
    a('v_lshrrev_b32 v40, 3, v0'); a('v_and_b32 v41, 7, v0')
    a('v_lshlrev_b32 v42, 3, v2'); a('v_lshl_add_u32 v42, v3, 5, v42')
    a('v_lshrrev_b32 v43, 1, v2'); a('v_lshlrev_b32 v43, 8, v43')
    a('v_lshl_add_u32 v43, v41, 5, v43'); a('v_and_b32 v44, 1, v2'); a('v_lshl_add_u32 v43, v44, 4, v43')
    a('s_lshl_b32 s5, s7, 9'); a('v_add_u32 v43, s5, v43')
    for x in range(4): a(f'v_mov_b32 v{HD+x}, 0')
    a('v_add_u32 v30, 32, v30')
    def codepf_again():
        if codepf:
            a('s_lshl_b32 s5, s7, 13')
            a('buffer_load_dword v61, v60, s[64:67], s5 offen')
    def poll(n, regs, width, voff, soffs, tag):
        lp = L('pl'); dn = L('pld')
        op = {2: 'dwordx2', 4: 'dwordx4'}[width]
        for u in range(n): a(f's_mov_b64 s[{40+2*u}:{41+2*u}], -1')
        a('s_mov_b32 s75, 0x40000')
        a.label(lp)
        for u in range(n):
            r = regs + width*u
            a(f's_mov_b64 exec, s[{40+2*u}:{41+2*u}]')
            a(f'buffer_load_{op} v[{r}:{r+width-1}], v{voff}, s[60:63], {soffs(u)} {pld}')
        a('s_mov_b64 exec, -1')
        a('s_mov_b64 s[58:59], 0')
        a('s_waitcnt vmcnt(0)')
        for u in range(n):
            r = regs + width*u
            if width == 2: a(f'v_max_u32 v46, v{r}, v{r+1}')
            else:
                a(f'v_max3_u32 v46, v{r}, v{r+1}, v{r+2}'); a(f'v_max_u32 v46, v46, v{r+3}')
            a(f'v_cmp_eq_u32 s[{40+2*u}:{41+2*u}], -1, v46')
        for u in range(n): a(f's_or_b64 s[58:59], s[58:59], s[{40+2*u}:{41+2*u}]')
        a(f's_cbranch_scc0 {dn}')
        a('s_sub_u32 s75, s75, 1'); a(f's_cbranch_scc1 {dn}')
        if pollsleep: a(f's_sleep {pollsleep}')
        a(f's_branch {lp}')
        a.label(dn)
    def sum8pairs(R):
        for st in (1, 2, 4):
            for u in range(0, 8, 2*st):
                a(f'v_pk_add_f32 v[{R+2*u}:{R+2*u+1}], v[{R+2*u}:{R+2*u+1}], v[{R+2*(u+st)}:{R+2*(u+st)+1}]')
    def gemv8(Y, Wb):
        for t in range(16):
            a(f'v_mov_b32_dpp v45, v{Y} row_newbcast:{t} row_mask:0xf bank_mask:0xf')
            for w in range(4): a(f'v_perm_b32 v{HA+w}, v45, v45, v{HS+w}')
            a(f'v_mfma_f32_16x16x32_bf16 v[{HD}:{HD+3}], v[{HA}:{HA+3}], v[{Wb+4*t}:{Wb+4*t+3}], v[{HD}:{HD+3}]')
        a('s_mov_b32 exec_lo, 0x00ff00ff'); a('s_mov_b32 exec_hi, 0xff00ff00')
        a(f'ds_write_b128 v43, v[{HD}:{HD+3}] offset:{L_RD}')
        a('s_mov_b64 exec, -1')
        a('s_waitcnt lgkmcnt(0)')
        a('s_barrier')
    a(f's_cmp_ge_u32 s2, {NMID}'); a('s_cbranch_scc1 L_ffn')
    a('s_lshr_b32 s9, s2, 3'); a('s_and_b32 s10, s2, 7')
    srd(44, 24, 4 << 20)
    a('v_lshlrev_b32 v44, 10, v40'); a('v_lshl_add_u32 v44, v41, 4, v44')
    a('s_lshl_b32 s11, s9, 2'); a('s_add_u32 s11, s11, s7')
    a('s_lshl_b32 s48, s11, 17'); a('s_lshl_b32 s5, s10, 7'); a('s_add_u32 s48, s48, s5')
    a('s_lshl_b32 s12, s11, 12'); a(f's_add_u32 s12, s12, {P1}')
    a('s_lshl_b32 s13, s2, 8'); a(f's_add_u32 s13, s13, {P2}')
    lds_spin(30, 31, 58, 2)
    stamp(5)
    for t in range(16):
        a(f'buffer_load_dwordx4 v[{W+4*t}:{W+4*t+3}], v44, s[44:47], s48 offen {wflags}')
        a('s_add_u32 s48, s48, 8192')
    codepf_again()
    a('s_barrier')
    stamp(6)
    poll(8, PR, 2, 42, lambda u: f's12 offen offset:{512*u}', 'p1')
    stamp(7)
    sum8pairs(PR)
    a(f'v_cvt_pk_bf16_f32 v47, v{PR}, v{PR+1}')
    gemv8(47, W)
    a('s_cmp_lg_u32 s7, 0'); a('s_cbranch_scc1 L_H_done')
    exec_lo(16)
    for k in range(8): a(f'ds_read_b128 v[{W+4*k}:{W+4*k+3}], v1 offset:{L_RD + 256*k}')
    for st in (1, 2, 4):
        for u in range(0, 8, 2*st):
            if st == 1: a(f's_waitcnt lgkmcnt({6-u})')
            for h in (0, 2):
                a(f'v_pk_add_f32 v[{W+4*u+h}:{W+4*u+h+1}], v[{W+4*u+h}:{W+4*u+h+1}], v[{W+4*(u+st)+h}:{W+4*(u+st)+h+1}]')
    a(f'buffer_store_dwordx4 v[{W}:{W+3}], v1, s[60:63], s13 offen {pst}')
    stamp(8)
    a('s_branch L_H_done')
    a.label('L_ffn')
    a(f's_sub_u32 s9, s2, {NMID}')
    srd(44, 28, 512*1792*2)
    srd(68, 30, 512*1792*2)
    srd(40, 16, 1024)
    a('v_mul_u32_u24 v44, 3584, v40'); a('v_lshl_add_u32 v44, v41, 4, v44')
    a(f's_mul_i32 s48, s7, {128*3584}'); a('s_lshl_b32 s5, s9, 7'); a('s_add_u32 s48, s48, s5')
    a('v_lshlrev_b32 v48, 10, v2'); a('v_lshl_add_u32 v48, v3, 4, v48')
    a('s_lshl_b32 s49, s9, 16'); a('s_lshl_b32 s5, s7, 8'); a('s_add_u32 s49, s49, s5')
    a('s_lshl_b32 s5, s7, 9'); a('v_add_u32 v42, s5, v42')
    a('v_lshrrev_b32 v49, 1, v42')
    a('buffer_load_dword v50, v49, s[40:43], 0 offen')
    for u in range(4): a(f's_mov_b32 s{10+u}, {P2 + 4096*u}')
    a('v_lshl_add_u32 v51, v3, 2, v2'); a('v_lshlrev_b32 v51, 2, v51')
    a('v_lshlrev_b32 v52, 5, v0')
    a('s_lshl_b32 s14, s9, 11'); a('s_lshl_b32 s5, s7, 9'); a('s_add_u32 s14, s14, s5'); a(f's_add_u32 s14, s14, {P3}')
    lds_spin(30, 31, 58, 2)
    stamp(5)
    for t in range(16):
        a(f'buffer_load_dwordx4 v[{W+4*t}:{W+4*t+3}], v44, s[44:47], s48 offen {wflags}')
        a(f's_add_u32 s48, s48, {8*3584}')
    for t in range(16):
        a(f'buffer_load_dwordx4 v[{W+64+4*t}:{W+64+4*t+3}], v48, s[68:71], s49 offen {wflags}')
        a('s_add_u32 s49, s49, 4096')
    codepf_again()
    a('s_barrier')
    stamp(6)
    poll(8, PR, 2, 42, lambda u: f's{10 + u//2} offen offset:{2048*(u % 2)}', 'p2')
    stamp(7)
    sum8pairs(PR)
    a(f'v_cvt_pk_bf16_f32 v54, v{PR}, v{PR+1}')
    a('v_lshlrev_b32 v56, 16, v50'); a('v_and_b32 v57, 0xffff0000, v50')
    a('v_and_b32 v55, 0xffff0000, v54'); a('v_lshlrev_b32 v54, 16, v54')
    a('v_pk_add_f32 v[54:55], v[54:55], v[56:57]')
    a('v_cvt_pk_bf16_f32 v54, v54, v55')
    a('v_and_b32 v55, 0xffff0000, v54'); a('v_lshlrev_b32 v54, 16, v54')
    a(f'ds_write_b64 v42, v[54:55] offset:{L_H}')
    a('s_waitcnt lgkmcnt(0)')
    a('s_barrier')
    a(f'ds_read_b128 v[32:35], v52 offset:{L_H}'); a(f'ds_read_b128 v[36:39], v52 offset:{L_H+16}')
    a('s_waitcnt lgkmcnt(0)')
    ln_stats(32, 53, 56)
    ln_apply(54, 53, 56, 32); ln_apply(55, 53, 56, 33)
    a('v_cvt_pk_bf16_f32 v47, v54, v55')
    gemv8(47, W)
    for k in range(4): a(f'ds_read2st64_b32 v[{32+2*k}:{33+2*k}], v51 offset0:{L_RD//256 + 2*k} offset1:{L_RD//256 + 2*k + 1}')
    for x in range(4): a(f'v_mov_b32 v{HD+x}, 0')
    a('s_waitcnt lgkmcnt(2)'); a('v_pk_add_f32 v[32:33], v[32:33], v[34:35]')
    a('s_waitcnt lgkmcnt(0)'); a('v_pk_add_f32 v[36:37], v[36:37], v[38:39]')
    a('v_pk_add_f32 v[32:33], v[32:33], v[36:37]')
    a('v_add_f32 v32, v32, v33')
    rnd(32, 32)
    a('v_mul_f32 v33, s57, v32'); a('v_exp_f32 v33, -v33'); a('v_add_f32 v33, 1.0, v33')
    a('v_rcp_f32 v34, v33')
    a('v_mul_f32 v32, v32, v34')
    a('v_cvt_pk_bf16_f32 v47, v32, v32')
    for t in range(16):
        for w in range(4):
            a(f'v_and_b32_dpp v{HA+w}, v47, v{HM+w} row_newbcast:{t} row_mask:0xf bank_mask:0xf')
        a(f'v_mfma_f32_16x16x32_bf16 v[{HD}:{HD+3}], v[{HA}:{HA+3}], v[{W+64+4*t}:{W+64+4*t+3}], v[{HD}:{HD+3}]')
    exec_lo(32)
    a(f'buffer_store_dwordx4 v[{HD}:{HD+3}], v28, s[60:63], s14 offen {pst}')
    a('s_mov_b64 exec, -1')
    stamp(8)
    a('s_cmp_ge_u32 s9, 8'); a('s_cbranch_scc1 L_H_done')
    a('s_cmp_lg_u32 s7, 0'); a('s_cbranch_scc1 L_H_done')
    a('v_lshlrev_b32 v44, 11, v2'); a('v_lshl_add_u32 v44, v3, 4, v44')
    a('s_lshl_b32 s5, s9, 8'); a('v_add_u32 v44, s5, v44')
    a('v_lshlrev_b32 v49, 4, v3'); a('v_add_u32 v49, s5, v49')
    a(f'ds_read_b128 v[36:39], v49 offset:{L_H}')
    for u in range(7): a(f's_mov_b32 s{8+u}, {P3 + 8192*u}')
    srd(68, 32, 1024)
    a('v_lshrrev_b32 v49, 1, v49')
    poll(7, W, 4, 44, lambda u: f's{8+u} offen', 'p3')
    stamp(9)
    for (x, y) in ((0, 1), (2, 3), (4, 5), (0, 2), (4, 6), (0, 4)):
        for h in (0, 2):
            a(f'v_pk_add_f32 v[{W+4*x+h}:{W+4*x+h+1}], v[{W+4*x+h}:{W+4*x+h+1}], v[{W+4*y+h}:{W+4*y+h+1}]')
    for sw in ('16', '32'):
        for x in range(4): a(f'v_mov_b32 v{W+4+x}, v{W+x}')
        for x in range(4): a(f'v_permlane{sw}_swap_b32 v{W+x}, v{W+4+x}')
        for h in (0, 2): a(f'v_pk_add_f32 v[{W+h}:{W+h+1}], v[{W+h}:{W+h+1}], v[{W+4+h}:{W+5+h}]')
    a(f'v_cvt_pk_bf16_f32 v{W+4}, v{W}, v{W+1}'); a(f'v_cvt_pk_bf16_f32 v{W+5}, v{W+2}, v{W+3}')
    a(f'v_lshlrev_b32 v{W}, 16, v{W+4}'); a(f'v_and_b32 v{W+1}, 0xffff0000, v{W+4}')
    a(f'v_lshlrev_b32 v{W+2}, 16, v{W+5}'); a(f'v_and_b32 v{W+3}, 0xffff0000, v{W+5}')
    a('s_waitcnt lgkmcnt(0)')
    a(f'v_pk_add_f32 v[{W}:{W+1}], v[{W}:{W+1}], v[36:37]'); a(f'v_pk_add_f32 v[{W+2}:{W+3}], v[{W+2}:{W+3}], v[38:39]')
    a(f'v_cvt_pk_bf16_f32 v{W+4}, v{W}, v{W+1}'); a(f'v_cvt_pk_bf16_f32 v{W+5}, v{W+2}, v{W+3}')
    exec_lo(16)
    a(f'buffer_store_dwordx2 v[{W+4}:{W+5}], v49, s[68:71], 0 offen')
    stamp(10)
    a.label('L_H_done')
    a('s_waitcnt lgkmcnt(0)')
    stamp_store()
    a.label('L_end')
    a('s_endpgm')
    a.label('L_codeend')
    body = a.finish()
    kd = f'''.section .rodata,"a"
.p2align 6
.amdhsa_kernel {name}
  .amdhsa_next_free_vgpr 256
  .amdhsa_next_free_sgpr 102
  .amdhsa_accum_offset 256
  .amdhsa_group_segment_fixed_size 0
  .amdhsa_kernarg_size 88
  .amdhsa_user_sgpr_count 2
  .amdhsa_user_sgpr_kernarg_segment_ptr 1
  .amdhsa_system_sgpr_workgroup_id_x 1
  .amdhsa_float_denorm_mode_32 3
.end_amdhsa_kernel
'''
    return HEADER + f'; @launch grid=(256,1,1) block=(512,1,1) lds={LDS_SIZE}\n' + body + kd

if __name__ == '__main__':
    if sys.argv[1].endswith('.json'):
        for s in json.load(open(sys.argv[1])):
            fn = s.pop('file')
            open(fn, 'w').write(gen(**s))
    else:
        kw = json.loads(sys.argv[2]) if len(sys.argv) > 2 else {}
        open(sys.argv[1], 'w').write(gen(**kw))
```
